```python
import torch

def _softmax(x, axis=-1):
    return torch.softmax(x, dim=axis)
def _gelu(x):
    return torch.nn.functional.gelu(x, approximate="tanh")
def _silu(x):
    return torch.nn.functional.silu(x)
def _sigmoid(x):
    return torch.sigmoid(x)
def _layernorm(x, axis=-1, eps=1e-5):
    m = x.mean(dim=axis, keepdim=True)
    v = x.var(dim=axis, keepdim=True, unbiased=False)
    return (x - m) / torch.sqrt(v + eps)
def _scatter_add(tgt, idx, src, axis=0):
    return tgt.clone().index_add_(axis, idx, src)
def _segment_sum(src, seg, n):
    out = torch.zeros((n,) + src.shape[1:], dtype=src.dtype)
    return out.index_add_(0, seg, src)
def _pad(x, pw):
    flat = tuple(v for pair in reversed(pw) for v in pair)
    return torch.nn.functional.pad(x, flat)

kernel_name = 'gated_mix__sliding_block_cached__dense_activation_relu__decode'

def setup_inputs():

    _w = (lambda a: (lambda t: t.to(torch.bfloat16) if t.is_floating_point() else t)(torch.as_tensor(a)))
    def _A_setup():
        B, Sq, D = 4, 1, 576
        Hq, Hkv, Sk, Dh = 32, 16, 4096, 128
        assert Hq % Hkv == 0, (Hq, Hkv)
        return {
            "x": _w((lambda *s: torch.randn(*s, dtype=torch.bfloat16) * 0.05)(B, Sq, D)),
            "k_cache": _w((lambda *s: torch.randn(*s, dtype=torch.bfloat16) * 6.4)(B, Hkv, Sk, Dh)),
            "v_cache": _w((lambda *s: torch.randn(*s, dtype=torch.bfloat16) * 0.4)(B, Hkv, Sk, Dh)),
            "wq": _w((lambda *s: torch.randn(*s, dtype=torch.bfloat16) * 6.4)(D, Hq * Dh) * (D ** -0.5)),
            "wo": _w((lambda *s: torch.randn(*s, dtype=torch.bfloat16) * 0.4)(Hq * Dh, D) * ((Hq * Dh) ** -0.5)),
        }
    _A_in = _A_setup()

    def _B_setup():
        B, S, D, Dff = 4, 1, 576, 4608
        return {
            "x": _w((lambda *s: torch.randn(*s, dtype=torch.bfloat16) * 0.05)(B, S, D)),
            "w1": _w((lambda *s: torch.randn(*s, dtype=torch.bfloat16) * 0.05)(D, Dff)),
            "w2": _w((lambda *s: torch.randn(*s, dtype=torch.bfloat16) * 0.05)(Dff, D)),
        }
    _B_in = _B_setup()

    return {
        "A_x": _A_in["x"],
        "A_k_cache": _A_in["k_cache"],
        "A_v_cache": _A_in["v_cache"],
        "A_wq": _A_in["wq"],
        "A_wo": _A_in["wo"],
        "B_x": _B_in["x"],
        "B_w1": _B_in["w1"],
        "B_w2": _B_in["w2"],
        "gate_w": _w((lambda *s: torch.randn(*s, dtype=torch.bfloat16) * 0.05)(576) * 16.0),
    }

def reference(A_x, A_k_cache, A_v_cache, A_wq, A_wo, B_x, B_w1, B_w2, gate_w):
    def _A_ref(x, k_cache, v_cache, wq, wo):
        B, Sq, D = x.shape
        Hq, Dh = 32, 128
        Hkv, Sk = k_cache.shape[1], k_cache.shape[2]
        W = min(4096, max(256, Sk // 4))
        rep = Hq // Hkv
        q = (lambda x, *d: x.permute(*d))((x @ wq).reshape(B, Sq, Hq, Dh), 0, 2, 1, 3)
        k = (lambda x, n, axis: torch.repeat_interleave(x, n, dim=axis))(k_cache[:, :, Sk - W:, :], rep, axis=1)
        v = (lambda x, n, axis: torch.repeat_interleave(x, n, dim=axis))(v_cache[:, :, Sk - W:, :], rep, axis=1)
        scores = torch.einsum("bhqd,bhkd->bhqk", q, k) * (Dh ** -0.5)
        p = _softmax(scores, axis=-1)
        o = torch.einsum("bhqk,bhkd->bhqd", p, v)
        return (lambda x, *d: x.permute(*d))(o, 0, 2, 1, 3).reshape(B, Sq, Hq * Dh) @ wo

    def _B_ref(x, w1, w2):
        h = torch.einsum("bsd,df->bsf", x, w1)
        zero = torch.zeros_like(h)
        h = torch.maximum(h, zero)
        return torch.einsum("bsf,fd->bsd", h, w2)

    x = A_x
    g = _sigmoid((x * gate_w).sum(-1, keepdims=True))
    a = _A_ref(x, A_k_cache, A_v_cache, A_wq, A_wo)
    b = _B_ref(x, B_w1, B_w2)
    return g * a + (1 - g) * b
```

```python
import sys
NAME = "gated_mix__sliding_block_cached__dense_activation_relu__decode"
def gen(W=28, segs='lin208', rot=0, nt=True, G=4):
    L = []; e = L.append
    e(f"; @launch grid=(256,1,1) block=(64,1,1) lds=163840")
    e('.amdgcn_target "amdgcn-amd-amdhsa--gfx950"'); e(".text"); e(f".globl {NAME}_kernel"); e(".p2align 8"); e(f".type {NAME}_kernel,@function"); e(f"{NAME}_kernel:")
    e("s_memrealtime s[80:81]")
    e("s_cmp_ge_u32 s2, 256"); e("s_cbranch_scc1 L_end")
    e("s_load_dwordx16 s[16:31], s[0:1], 0")
    e("s_load_dwordx2 s[64:65], s[0:1], 88")
    e(f"s_mov_b32 s66, {256<<20}"); e("s_mov_b32 s67, 0x20000")
    e("s_and_b32 s4, s2, 7"); e("s_lshl_b32 s4, s4, 1"); e("s_bfe_u32 s5, s2, 0x10003"); e("s_add_u32 s4, s4, s5"); e("s_lshr_b32 s5, s2, 4")
    e("s_lshr_b32 s6, s5, 2"); e("s_lshl_b32 s6, s6, 24"); e("s_lshl_b32 s7, s4, 20"); e("s_add_u32 s6, s6, s7")
    e("s_and_b32 s7, s5, 3"); e("s_lshl_b32 s7, s7, 16"); e("s_add_u32 s6, s6, s7"); e("s_add_u32 s6, s6, 0xC0000")
    e("v_lshlrev_b32 v1, 4, v0")
    if isinstance(rot, int):
        e(f"s_mul_i32 s8, s2, {rot}")
    else:
        for t in rot: e(t)
        e("s_lshl_b32 s8, s8, 12")
    e("s_and_b32 s8, s8, 0xffff")
    e("s_waitcnt lgkmcnt(0)"); e("s_memrealtime s[82:83]")
    ntf = " nt" if nt else ""
    def seg(lab, p, size, base, n, wrap):
        e(f"s_mov_b32 s40, s{p}"); e(f"s_mov_b32 s41, s{p+1}"); e(f"s_mov_b32 s42, {size}"); e("s_mov_b32 s43, 0x20000")
        for t in base: e(t)
        e("s_mov_b32 s10, s8" if wrap else "s_mov_b32 s10, 0")
        e(f"s_mov_b32 s12, {n//G}")
        e(f"{lab}:")
        e("s_add_u32 s11, s9, s10")
        e("s_and_b32 m0, s10, 0xffff")
        e(f"s_add_u32 s10, s10, {G*1024}")
        if wrap: e("s_and_b32 s10, s10, 0xffff")
        for i in range(G): e(f"buffer_load_dwordx4 v1, s[40:43], s11 offen offset:{i*1024}{ntf} lds")
        e(f"s_waitcnt vmcnt({W})")
        e("s_sub_u32 s12, s12, 1"); e("s_cmp_lg_u32 s12, 0"); e(f"s_cbranch_scc1 {lab}")
    e("s_memrealtime s[84:85]"); e("s_memrealtime s[86:87]")
    if segs == 'lin208':
        seg("L1", 18, 64<<20, [f"s_mul_i32 s9, s2, {256*1024}"], 208, False)
    elif segs == 'real':
        seg("L1", 22, 576*8192, ["s_mul_i32 s9, s2, 18432"], 16, False)
        seg("L2", 28, 576*9216, ["s_mul_i32 s9, s2, 20480"], 20, False)
        seg("L3", 18, 64<<20, ["s_mov_b32 s9, s6"], 64, True)
        e("s_memrealtime s[84:85]")
        seg("L4", 20, 64<<20, ["s_mov_b32 s9, s6"], 64, True)
        e("s_memrealtime s[86:87]")
        seg("L5", 30, 576*9216, ["s_mul_i32 s9, s2, 20480"], 20, False)
        seg("L6", 24, 576*8192, ["s_mul_i32 s9, s2, 18432"], 16, False)
        seg("L7", 18, 64<<20, ["s_mul_i32 s9, s2, 8192"], 8, False)
    elif segs == 'kv':
        seg("L3", 18, 64<<20, ["s_mov_b32 s9, s6"], 64, True)
        e("s_memrealtime s[84:85]")
        seg("L4", 20, 64<<20, ["s_mov_b32 s9, s6"], 64, True)
    elif segs == 'lin128':
        seg("L3", 18, 64<<20, ["s_lshl_b32 s9, s2, 16"], 64, True)
        e("s_memrealtime s[84:85]")
        seg("L4", 20, 64<<20, ["s_lshl_b32 s9, s2, 16"], 64, True)
    e("s_waitcnt vmcnt(0)")
    e("s_memrealtime s[88:89]"); e("s_waitcnt lgkmcnt(0)")
    for i in range(5):
        e(f"v_mov_b32 v8, s{80+2*i}"); e(f"v_mov_b32 v9, s{81+2*i}")
        e(f"s_lshl_b32 s11, s2, 8"); e(f"s_add_u32 s11, s11, {(128<<20) + i*8}")
        e("v_mov_b32 v10, 0"); e(f"buffer_store_dwordx2 v[8:9], v10, s[64:67], s11 offen"); e("s_nop 2")
    e("L_end:"); e("s_endpgm")
    e('.section .rodata,"a"'); e(".p2align 6"); e(f".amdhsa_kernel {NAME}_kernel")
    e(f"  .amdhsa_next_free_vgpr 16"); e("  .amdhsa_next_free_sgpr 96"); e(f"  .amdhsa_accum_offset 16")
    e("  .amdhsa_group_segment_fixed_size 0"); e("  .amdhsa_kernarg_size 96"); e("  .amdhsa_user_sgpr_count 2"); e("  .amdhsa_user_sgpr_kernarg_segment_ptr 1"); e("  .amdhsa_system_sgpr_workgroup_id_x 1")
    e(".end_amdhsa_kernel")
    return "\n".join(L) + "\n"
if __name__ == "__main__":
    fs = []
    R = {
     'none': 0, 'g1': 4096, 'g5': 4096*5, 'g3': 4096*3, 'g7': 4096*7,
     'kvh': ["s_mov_b32 s8, s4"],
     'j': ["s_mov_b32 s8, s5"],
     'xor': ["s_xor_b32 s8, s4, s5"],
     'add': ["s_add_u32 s8, s4, s5"],
     'b4': ["s_and_b32 s8, s5, 12"],
     's4': ["s_lshl_b32 s8, s5, 2"],
     'k4': ["s_lshl_b32 s8, s4, 2"],
     'kh': ["s_and_b32 s8, s4, 12"],
     'b1': ["s_lshr_b32 s8, s5, 2"],
     'g5j3': ["s_mul_i32 s8, s2, 5", "s_mul_i32 s9, s5, 3", "s_add_u32 s8, s8, s9"],
    }
    fs.append("s3_lin208.s"); open(fs[-1], "w").write(gen(segs='lin208'))
    for nm, r in R.items():
        f = f"s3_real_{nm}.s"; open(f, "w").write(gen(segs='real', rot=r)); fs.append(f)
    print(' '.join(fs))
```

```python
import gen_s3, re
def mk(W, NA, Wrest=None):
    s = gen_s3.gen(W=W, segs='lin208')
    if Wrest is None:
        s = s.replace("L1:", f"s_cmp_ge_u32 s2, {NA}\ns_cbranch_scc1 L_skip\nL1:").replace("s_waitcnt vmcnt(0)\ns_memrealtime s[88:89]", "L_skip:\ns_waitcnt vmcnt(0)\ns_memrealtime s[88:89]")
    else:
        s = s.replace(f"s_waitcnt vmcnt({W})\n", f"s_waitcnt vmcnt({W})\ns_cmp_lt_u32 s2, {NA}\ns_cbranch_scc1 L_nw\ns_waitcnt vmcnt({Wrest})\nL_nw:\n")
    return s
fs = []
for W in (12, 20, 28, 36, 48, 59):
    f = f"cap_i{W}.s"; open(f, "w").write(mk(W, 16)); fs.append(f)
for W in (24, 28, 36, 48, 59):
    f = f"cap_l{W}.s"; open(f, "w").write(mk(W, 16, 24)); fs.append(f)
print(' '.join(fs)); print(', '.join(f'"exp/{f}"' for f in fs))
```
